```python
import torch

def _softmax(x, axis=-1):
    return torch.softmax(x, dim=axis)
def _gelu(x):
    return torch.nn.functional.gelu(x, approximate="tanh")
def _silu(x):
    return torch.nn.functional.silu(x)
def _sigmoid(x):
    return torch.sigmoid(x)
def _layernorm(x, axis=-1, eps=1e-5):
    m = x.mean(dim=axis, keepdim=True)
    v = x.var(dim=axis, keepdim=True, unbiased=False)
    return (x - m) / torch.sqrt(v + eps)
def _scatter_add(tgt, idx, src, axis=0):
    return tgt.clone().index_add_(axis, idx, src)
def _segment_sum(src, seg, n):
    out = torch.zeros((n,) + src.shape[1:], dtype=src.dtype)
    return out.index_add_(0, seg, src)
def _pad(x, pw):
    flat = tuple(v for pair in reversed(pw) for v in pair)
    return torch.nn.functional.pad(x, flat)

kernel_name = 'gated_mix__gqa_block_cached__glu_gated_glu__decode'

def setup_inputs():

    _w = (lambda a: (lambda t: t.to(torch.bfloat16) if t.is_floating_point() else t)(torch.as_tensor(a)))
    def _A_setup():
        B, Sq, D = 4, 1, 512
        Hq, Hkv, Sk, Dh = 32, 8, 4096, 128
        assert Hq % Hkv == 0, (Hq, Hkv)
        return {
            "x": _w((lambda *s: torch.randn(*s, dtype=torch.bfloat16) * 0.05)(B, Sq, D)),
            "k_cache": _w((lambda *s: torch.randn(*s, dtype=torch.bfloat16) * 6.4)(B, Hkv, Sk, Dh)),
            "v_cache": _w((lambda *s: torch.randn(*s, dtype=torch.bfloat16) * 1.6)(B, Hkv, Sk, Dh)),
            "wq": _w((lambda *s: torch.randn(*s, dtype=torch.bfloat16) * 6.4)(D, Hq * Dh) * (D ** -0.5)),
            "wo": _w((lambda *s: torch.randn(*s, dtype=torch.bfloat16) * 1.6)(Hq * Dh, D) * ((Hq * Dh) ** -0.5)),
        }
    _A_in = _A_setup()

    def _B_setup():
        B, S, D, F = 4, 1, 512, 1792
        return {
            "x": _w((lambda *s: torch.randn(*s, dtype=torch.bfloat16) * 0.05)(B, S, D)),
            "w_gate": _w((lambda *s: torch.randn(*s, dtype=torch.bfloat16) * 3.2)(D, F)),
            "w_up": _w((lambda *s: torch.randn(*s, dtype=torch.bfloat16) * 0.1)(D, F)),
            "w_down": _w((lambda *s: torch.randn(*s, dtype=torch.bfloat16) * 0.1)(F, D)),
        }
    _B_in = _B_setup()

    return {
        "A_x": _A_in["x"],
        "A_k_cache": _A_in["k_cache"],
        "A_v_cache": _A_in["v_cache"],
        "A_wq": _A_in["wq"],
        "A_wo": _A_in["wo"],
        "B_x": _B_in["x"],
        "B_w_gate": _B_in["w_gate"],
        "B_w_up": _B_in["w_up"],
        "B_w_down": _B_in["w_down"],
        "gate_w": _w((lambda *s: torch.randn(*s, dtype=torch.bfloat16) * 0.05)(512) * 16.0),
    }

def reference(A_x, A_k_cache, A_v_cache, A_wq, A_wo, B_x, B_w_gate, B_w_up, B_w_down, gate_w):
    def _A_ref(x, k_cache, v_cache, wq, wo):
        B, Sq, D = x.shape
        Hq, Dh = 32, 128
        Hkv = k_cache.shape[1]
        rep = Hq // Hkv
        q = (lambda x, *d: x.permute(*d))((x @ wq).reshape(B, Sq, Hq, Dh), 0, 2, 1, 3)
        k = (lambda x, n, axis: torch.repeat_interleave(x, n, dim=axis))(k_cache, rep, axis=1)
        v = (lambda x, n, axis: torch.repeat_interleave(x, n, dim=axis))(v_cache, rep, axis=1)
        scores = torch.einsum("bhqd,bhkd->bhqk", q, k) * (Dh ** -0.5)
        p = _softmax(scores, axis=-1)
        o = torch.einsum("bhqk,bhkd->bhqd", p, v)
        return (lambda x, *d: x.permute(*d))(o, 0, 2, 1, 3).reshape(B, Sq, Hq * Dh) @ wo

    def _B_ref(x, w_gate, w_up, w_down):
        g = torch.einsum("bsd,df->bsf", x, w_gate)
        u = torch.einsum("bsd,df->bsf", x, w_up)
        h = _sigmoid(g) * u
        return torch.einsum("bsf,fd->bsd", h, w_down)

    x = A_x
    g = _sigmoid((x * gate_w).sum(-1, keepdims=True))
    a = _A_ref(x, A_k_cache, A_v_cache, A_wq, A_wo)
    b = _B_ref(x, B_w_gate, B_w_up, B_w_down)
    return g * a + (1 - g) * b
```

```python
import re

class Asm:
    def __init__(self):
        self.L = []
    def __call__(self, s):
        for line in s.strip("\n").split("\n"):
            line = line.strip()
            if line: self.L.append(line)
    def text(self):
        return "\n".join(self.L) + "\n"

def _regs(tok):
    tok = tok.strip()
    tok = re.sub(r"^-|^abs\(|\)$|^\|", "", tok).strip("|")
    m = re.fullmatch(r"([vsa])\[(\d+):(\d+)\]", tok)
    if m: return {(m.group(1), k) for k in range(int(m.group(2)), int(m.group(3)) + 1)}
    m = re.fullmatch(r"([vsa])(\d+)", tok)
    if m: return {(m.group(1), int(m.group(2)))}
    if tok in ("vcc", "vcc_lo", "vcc_hi"): return {("vcc", 0)}
    if tok in ("exec", "exec_lo", "exec_hi"): return {("exec", 0)}
    if tok == "m0": return {("m0", 0)}
    return set()

TRANS = ("v_exp_f32", "v_log_f32", "v_rcp_f32", "v_rsq_f32", "v_sqrt_f32", "v_sin_f32", "v_cos_f32")

def parse(line):
    line = line.split(";")[0].strip()
    if not line or line.endswith(":") or line.startswith("."): return None
    m = re.match(r"^(\S+)\s*(.*)$", line)
    op, rest = m.group(1), m.group(2)
    ops = [o.strip() for o in re.split(r",(?![^\[]*\])", rest)] if rest else []
    mods = ""
    if ops:
        parts = ops[-1].split(None, 1)
        if len(parts) > 1: ops[-1], mods = parts[0], parts[1]
    return op, ops, mods

def classify(op, ops, mods):
    R = lambda idxs: set().union(*[_regs(ops[i]) for i in idxs if i < len(ops)]) if idxs else set()
    n = len(ops)
    if op.startswith("v_mfma"):
        return dict(kind="mfma", wr=R([0]), rd=R([1, 2, 3]), a=R([1]), b=R([2]), c=R([3]))
    if op.startswith("v_cmp"):
        wr = R([0]);
        if op.startswith("v_cmpx"): wr |= {("exec", 0)}
        return dict(kind="valu", wr=wr, rd=R(range(1, n)))
    if op.startswith("v_readlane") or op.startswith("v_readfirstlane"):
        return dict(kind="valu", wr=R([0]), rd=R(range(1, n)), rl=True)
    if op.startswith("v_permlane") and "swap" in op:
        return dict(kind="valu", wr=R([0, 1]), rd=R([0, 1]), perm=True)
    if op.startswith("v_add_co") or op.startswith("v_sub_co") or op.startswith("v_addc_co"):
        return dict(kind="valu", wr=R([0, 1]), rd=R(range(2, n)))
    if op.startswith("v_"):
        rd = R(range(1, n))
        if op.startswith("v_fmac") or op.startswith("v_mac") or "dpp" in op and False: rd |= R([0])
        if op.startswith("v_cndmask") and n == 3: rd |= {("vcc", 0)}
        d = dict(kind="valu", wr=R([0]), rd=rd)
        if "dpp" in op or "row_" in mods or "quad_perm" in mods: d["dpp"] = R([1])
        if any(op.startswith(t) for t in TRANS): d["trans"] = True
        return d
    if op.startswith("buffer_") or op.startswith("global_"):
        st = "store" in op or "atomic" in op
        lds = re.search(r"\blds\b", mods) is not None
        if op.startswith("buffer_"):
            if lds: return dict(kind="vmem", wr=set(), rd=R(range(0, n)) | {("m0", 0)}, lds=True)
            if st: return dict(kind="vmem", wr=set(), rd=R(range(0, n)), data=R([0]), wide=("x3" in op or "x4" in op))
            return dict(kind="vmem", wr=R([0]), rd=R(range(1, n)))
        else:
            if st: return dict(kind="vmem", wr=set(), rd=R(range(0, n)), data=R([1]), wide=("x3" in op or "x4" in op))
            return dict(kind="vmem", wr=R([0]), rd=R(range(1, n)))
    if op.startswith("ds_"):
        if "read" in op or "rtn" in op or "permute" in op or "swizzle" in op:
            return dict(kind="ds", wr=R([0]), rd=R(range(1, n)))
        return dict(kind="ds", wr=set(), rd=R(range(0, n)))
    if op.startswith("s_"):
        if op in ("s_nop",): return dict(kind="nop", n=int(ops[0], 0) + 1, wr=set(), rd=set())
        if op.startswith("s_cmp") or op.startswith("s_cbranch") or op in ("s_branch", "s_barrier", "s_waitcnt", "s_sleep", "s_endpgm", "s_setprio", "s_bitcmp1_b32", "s_bitcmp0_b32"):
            return dict(kind="salu", wr=set(), rd=R(range(0, n)))
        wr = R([0])
        if "saveexec" in op: wr |= {("exec", 0)}
        return dict(kind="salu", wr=wr, rd=R(range(1, n)))
    return dict(kind="other", wr=set(), rd=set())

def mfma_passes(op):
    if "32x32x16" in op or "32x32x8" in op: return 8
    if "16x16x32" in op or "16x16x16" in op: return 4
    if "16x16x4_f32" in op: return 8
    return 16

def check_hazards(lines):
    ins = []
    for ln, line in enumerate(lines):
        p = parse(line)
        if p is None: continue
        op, ops, mods = p
        c = classify(op, ops, mods); c["op"] = op; c["line"] = line; c["ln"] = ln
        ins.append(c)
    warn = []
    def dist(i, j):
        d = 0
        for k in range(i + 1, j):
            d += ins[k].get("n", 1) if ins[k]["kind"] == "nop" else 1
        return d
    for j, c in enumerate(ins):
        for i in range(j - 1, max(-1, j - 24), -1):
            p = ins[i]
            if p["op"] in ("s_branch", "s_endpgm"): break
            d = dist(i, j)
            if d >= 20: break
            need = 0; why = ""
            pw = p["wr"]
            vw = {r for r in pw if r[0] in "va"}
            sw = {r for r in pw if r[0] in ("s", "vcc")}
            if p["kind"] == "valu":
                if c["kind"] == "mfma" and vw & c["rd"]: need, why = 2, "VALU->MFMA"
                if c.get("dpp") and vw & c["dpp"]: need, why = max(need, 2), "VALU->DPP"
                if c.get("perm") and vw & c["rd"]: need, why = max(need, 2), "VALU->permlane"
                if c.get("rl") and vw & c["rd"]: need, why = max(need, 1), "VALU->readlane"
                if p.get("trans") and c["kind"] == "valu" and not c.get("trans") and vw & c["rd"]: need, why = max(need, 1), "trans->VALU"
                if p.get("trans") and c["kind"] in ("mfma",) and vw & c["rd"]: need, why = max(need, 2), "trans->mfma"
                if c["kind"] == "vmem" and sw & c["rd"]: need, why = max(need, 5), "VALU sgpr->VMEM"
                if c["kind"] == "valu" and sw & c["rd"]: need, why = max(need, 2), "VALU sgpr->VALU"
                if ("exec", 0) in pw and c.get("dpp"): need, why = max(need, 5), "VALU exec->DPP"
                if ("exec", 0) in pw and c["kind"] == "mfma": need, why = max(need, 4), "VALU exec->MFMA"
            if p["kind"] == "salu" and ("m0", 0) in pw and c.get("lds"): need, why = max(need, 1), "m0->ldsdma"
            if p["kind"] == "mfma":
                ps = mfma_passes(p["op"])
                t = {2: (2, 4, 5, 5, 1), 4: (0, 6, 8, 8, 3), 8: (0, 10, 12, 12, 7), 16: (0, 18, 20, 20, 15)}[ps]
                if c["kind"] == "mfma":
                    if vw & c["c"]:
                        if vw == c["c"] and mfma_passes(c["op"]) == ps: need, why = max(need, t[0]), "MFMA->MFMA C same"
                        else: need, why = max(need, t[1]), "MFMA->MFMA C overlap"
                    if vw & (c["a"] | c["b"]): need, why = max(need, t[2]), "MFMA->MFMA A/B"
                    if vw & c["wr"] and not (vw & c["c"]): need, why = max(need, t[3]), "MFMA->MFMA WAW"
                elif c["kind"] in ("valu", "vmem", "ds") and vw & (c["rd"] | c["wr"]): need, why = max(need, t[3]), "MFMA->VALU/VMEM/DS"
                if c["kind"] == "valu" and p["c"] & c["wr"] and not (vw & c["wr"]): need, why = max(need, t[4]), "MFMA srcC WAR"
            if p["kind"] == "vmem" and p.get("wide") and c["kind"] in ("valu",) and p["data"] & c["wr"]: need, why = max(need, 2), "store data WAR"
            if need > d:
                warn.append(f"HAZARD {why}: need {need} got {d}:\n    {p['line']}\n    {c['line']}")
    return warn
```

```python
import sys, struct, math
sys.path.insert(0, "dev")
from asmlib import Asm, check_hazards

NAME = "gated_mix__gqa_block_cached__glu_gated_glu__decode_kernel"
def f32hex(x): return "0x%08x" % struct.unpack("<I", struct.pack("<f", x))[0]

L_WQ, L_G = 0, 16384
PST = 36
L_P = 32768; P_WAVE = 16 * PST * 4
L_ML = L_P + 4 * P_WAVE
L_GT = L_ML + 128
L_CNT = L_GT + 16
L_R = 42240
L_O = L_R + 8192
L_Q = L_O + 1024
L_H = L_Q + 1024
L_WO = L_WQ
L_WD = L_G
LDS_SIZE = L_H + 512
C_A, C_Q, C_M, C_W = L_CNT, L_CNT + 4, L_CNT + 8, L_CNT + 12
W_QP, W_GP, W_ML, W_OP, W_OUTP, W_STAMP = 0, 0x40000, 0x78000, 0x80000, 0x100000, 0x180000
WS_BYTES = 0x200000

def gen(D=5, B1_AT=31, B2_AT=31, stamps=False, nt="nt", rot_mode=1, SPIN=4096, ntw="nt", skip=(), DV=None):
    A = Asm()
    if DV is None: DV = D
    C2 = (128 ** -0.5) * math.log2(math.e)
    LOG2E = math.log2(math.e)
    lab = [0]
    def stamp(k):
        if stamps: A(f"s_memrealtime s[{80+2*k}:{81+2*k}]")
    def srd(d, lo, size):
        A(f"s_mov_b32 s{d}, s{lo}\ns_mov_b32 s{d+1}, s{lo+1}\ns_mov_b32 s{d+2}, {size:#x}\ns_mov_b32 s{d+3}, 0x20000")
    def sigmoid(dst, src, t):
        A(f"v_mul_f32 v{t}, {f32hex(-LOG2E)}, v{src}")
        A(f"v_exp_f32 v{t}, v{t}\ns_nop 0\nv_add_f32 v{t}, 1.0, v{t}\nv_rcp_f32 v{dst}, v{t}\ns_nop 0")
    def stamps_out():
        if not stamps: return
        A("s_waitcnt lgkmcnt(0)")
        A("s_lshl_b32 s70, s2, 3\ns_add_u32 s70, s70, s3\ns_lshl_b32 s70, s70, 5\ns_add_u32 s70, s70, %d" % W_STAMP)
        for k in range(8): A(f"v_mov_b32 v{8+k}, s{80+2*k}")
        A("v_mov_b32 v4, 0\ns_mov_b64 exec, 1")
        A("buffer_store_dwordx4 v[8:11], v4, s[44:47], s70 offen\nbuffer_store_dwordx4 v[12:15], v4, s[44:47], s70 offen offset:16")
        A("s_waitcnt vmcnt(0)")
    def lds_signal(cnt, va, vb):
        A(f"v_mov_b32 v{va}, {cnt}\nv_mov_b32 v{vb}, 1\ns_mov_b64 exec, 1\nds_add_u32 v{va}, v{vb}\ns_mov_b64 exec, -1")
    def lds_wait(cnt, val, va, vb):
        lab[0] += 1; l = lab[0]
        A(f"v_mov_b32 v{va}, {cnt}\ns_mov_b32 s63, {SPIN*16}")
        A(f"L_lw{l}:\nds_read_b32 v{vb}, v{va}\ns_waitcnt lgkmcnt(0)\nv_cmp_gt_u32 vcc, {val}, v{vb}\ns_cbranch_vccz L_lwd{l}")
        A(f"s_sub_u32 s63, s63, 1\ns_cmp_eq_u32 s63, 0\ns_cbranch_scc1 L_lwd{l}\ns_branch L_lw{l}\nL_lwd{l}:")
    def dma_tile(srd0, nrows_instr, soff, m0reg, rowstride):
        for nn in range(nrows_instr):
            A(f"s_mov_b32 m0, s{m0reg}\ns_add_u32 s{m0reg}, s{m0reg}, 1024\nbuffer_load_dwordx4 v4, s[{srd0}:{srd0+3}], s{soff} offen {ntw} lds\ns_add_u32 s{soff}, s{soff}, {8*rowstride}")
    def tile_voff(rowstride):
        A(f"v_lshrrev_b32 v4, 3, v1\nv_mul_u32_u24 v4, {rowstride}, v4\nv_and_b32 v5, 7, v1\nv_lshlrev_b32 v5, 4, v5\nv_add_u32 v4, v4, v5")
    def tr_base(dst, tmp):
        A(f"v_lshrrev_b32 v{dst}, 2, v3\nv_lshlrev_b32 v{tmp}, 3, v2\nv_add_u32 v{dst}, v{dst}, v{tmp}\nv_lshlrev_b32 v{dst}, 7, v{dst}\nv_and_b32 v{tmp}, 3, v3\nv_lshlrev_b32 v{tmp}, 3, v{tmp}\nv_add_u32 v{dst}, v{dst}, v{tmp}")

    A("; @launch grid=(256,1,1) block=(512,1,1) lds=%d" % LDS_SIZE)
    A('.amdgcn_target "amdgcn-amd-amdhsa--gfx950"')
    A(f".text\n.globl {NAME}\n.p2align 8\n.type {NAME},@function\n{NAME}:")
    A("s_cmp_ge_u32 s2, 256\ns_cbranch_scc1 L_end")
    if stamps:
        for k in range(8): A(f"s_mov_b32 s{80+2*k}, 0")
    stamp(0)
    A("""
    s_load_dwordx16 s[8:23], s[0:1], 0
    s_load_dwordx8 s[24:31], s[0:1], 64
    s_load_dwordx2 s[32:33], s[0:1], 96
    v_and_b32 v1, 63, v0
    v_lshrrev_b32 v4, 6, v0
    s_and_b32 s34, s2, 7
    s_lshr_b32 s35, s2, 3
    v_readfirstlane_b32 s3, v4
    s_lshr_b32 s36, s35, 3
    s_and_b32 s37, s35, 7
    s_lshl_b32 s38, s34, 2
    s_add_u32 s38, s38, s36
    v_lshrrev_b32 v2, 4, v1
    v_and_b32 v3, 15, v1
    s_and_b32 s39, s3, 3
    s_lshl_b32 s60, s36, 3
    s_add_u32 s60, s60, s34
    s_lshl_b32 s60, s60, 20
    s_lshl_b32 s61, s37, 17
    s_add_u32 s60, s60, s61
    s_lshl_b32 s61, s39, 15
    s_add_u32 s60, s60, s61
    """)
    if rot_mode == 0: A("s_mov_b32 s61, 0")
    elif rot_mode == 1: A("s_add_u32 s61, s35, s39\ns_and_b32 s61, s61, 7")
    elif rot_mode == 2: A("s_lshl_b32 s61, s39, 1\ns_add_u32 s61, s61, s35\ns_add_u32 s61, s61, s34\ns_and_b32 s61, s61, 7")
    A("s_waitcnt lgkmcnt(0)")
    srd(44, 32, WS_BYTES)
    A("s_cmp_ge_u32 s3, 4\ns_cbranch_scc1 L_vpath")

    KD, SAC, QOP = 64, 32, 16
    srd(40, 10, 0x2000000)
    A("v_lshlrev_b32 v4, 8, v3\nv_lshlrev_b32 v5, 4, v2\nv_add_u32 v4, v4, v5")
    n = 0
    for kb in range(8):
        A(f"s_add_u32 s62, s61, {kb}\ns_and_b32 s62, s62, 7\ns_lshl_b32 s62, s62, 12\ns_add_u32 s62, s62, s60")
        for s in range(4):
            r = KD + (kb * 4 + s) * 4
            A(f"buffer_load_dwordx4 v[{r}:{r+3}], v4, s[40:43], s62 offen offset:{s*64} {nt}")
            if n == D - 1: A("s_barrier")
            if n == B1_AT: A("s_barrier")
            if n >= D - 1 and n < 31: A(f"s_waitcnt vmcnt({D-1})")
            n += 1
    stamp(1)
    srd(56, 30, 256)
    A("v_and_b32 v5, 0x38, v1\nv_lshlrev_b32 v5, 2, v5")
    A(f"s_mov_b32 s63, {SPIN}")
    A("L_kpoll:")
    A("buffer_load_dword v6, v5, s[56:59], 0 offen sc1")
    A("s_waitcnt vmcnt(0)")
    A("v_cmp_ne_u32 vcc, 32, v6")
    A("s_cbranch_vccz L_kpoll_done")
    A("s_sub_u32 s63, s63, 1\ns_cmp_eq_u32 s63, 0\ns_cbranch_scc1 L_kpoll_done")
    A("s_sleep 2\ns_branch L_kpoll")
    A("L_kpoll_done:")
    stamp(2)
    A("v_lshlrev_b32 v5, 3, v1")
    A(f"s_lshl_b32 s62, s36, 16\ns_lshl_b32 s63, s34, 13\ns_add_u32 s62, s62, s63\ns_lshl_b32 s63, s39, 11\ns_add_u32 s62, s62, s63\ns_add_u32 s62, s62, {W_QP}")
    for kq in range(4):
        A(f"buffer_load_dwordx2 v[{16+2*kq}:{17+2*kq}], v5, s[44:47], s62 offen offset:{kq*512} sc1")
    A("v_lshlrev_b32 v6, 2, v1")
    A(f"s_min_u32 s62, s38, 27\ns_lshl_b32 s62, s62, 13\ns_lshl_b32 s63, s39, 11\ns_add_u32 s62, s62, s63\ns_add_u32 s62, s62, {W_GP}")
    for mk in range(8):
        A(f"buffer_load_dword v{24+mk}, v6, s[44:47], s62 offen offset:{mk*256} sc1")
    A(f"s_lshl_b32 s62, s39, 8\ns_add_u32 s62, s62, {L_Q}\nv_lshlrev_b32 v7, 2, v1\nv_add_u32 v7, s62, v7")
    A("s_waitcnt vmcnt(8)")
    A("v_add_f32 v16, v16, v18\nv_add_f32 v17, v17, v19\nv_add_f32 v20, v20, v22\nv_add_f32 v21, v21, v23\nv_add_f32 v16, v16, v20\nv_add_f32 v17, v17, v21")
    A("v_cvt_pk_bf16_f32 v16, v16, v17\nds_write_b32 v7, v16")
    lds_signal(C_Q, 8, 9)
    A("s_waitcnt vmcnt(0)")
    A("v_add_f32 v24, v24, v25\nv_add_f32 v26, v26, v27\nv_add_f32 v28, v28, v29\nv_add_f32 v30, v30, v31\nv_add_f32 v24, v24, v26\nv_add_f32 v28, v28, v30")
    sigmoid(25, 24, 26)
    A("v_mul_f32 v25, v25, v28\nv_cvt_pk_bf16_f32 v25, v25, v25")
    A(f"s_lshl_b32 s62, s39, 7\ns_add_u32 s62, s62, {L_H}\nv_lshlrev_b32 v7, 1, v1\nv_add_u32 v7, s62, v7\nds_write_b16 v7, v25")
    A(f"v_lshlrev_b32 v6, 2, v2\nv_and_b32 v7, 3, v3\nv_add_u32 v6, v6, v7\nv_mul_u32_u24 v6, {PST}, v6\nv_lshrrev_b32 v7, 2, v3\nv_add_u32 v6, v6, v7\nv_lshlrev_b32 v6, 2, v6")
    A(f"s_mul_i32 s62, s39, {P_WAVE}\ns_add_u32 s62, s62, {L_P}\nv_add_u32 v6, s62, v6")
    A("v_lshrrev_b32 v5, 2, v3\nv_lshlrev_b32 v5, 8, v5\nv_lshlrev_b32 v7, 4, v2\nv_add_u32 v5, v5, v7")
    lds_wait(C_Q, 4, 8, 9)
    for s in range(4):
        A(f"ds_read_b128 v[{QOP+4*s}:{QOP+4*s+3}], v5 offset:{L_Q+s*64}")
    A("s_waitcnt lgkmcnt(0)")
    for s in range(4):
        for kb in range(8):
            d = SAC + 4 * kb; k = KD + (kb * 4 + s) * 4
            c = "0" if s == 0 else f"v[{d}:{d+3}]"
            A(f"v_mfma_f32_16x16x32_bf16 v[{d}:{d+3}], v[{QOP+4*s}:{QOP+4*s+3}], v[{k}:{k+3}], {c}")
    A("s_nop 7\ns_nop 1")
    S = [SAC + 4 * kb for kb in range(8)]
    A(f"v_max3_f32 v8, v{S[0]}, v{S[1]}, v{S[2]}\nv_max3_f32 v9, v{S[3]}, v{S[4]}, v{S[5]}\nv_max3_f32 v8, v8, v{S[6]}, v{S[7]}\nv_max_f32 v8, v8, v9")
    for r in (8, 4, 2, 1):
        A(f"s_nop 1\nv_max_f32_dpp v8, v8, v8 row_ror:{r} row_mask:0xf bank_mask:0xf")
    A(f"s_mov_b32 s62, {f32hex(C2)}")
    A("v_mul_f32 v8, s62, v8")
    for kb in range(8):
        A(f"v_fma_f32 v{S[kb]}, v{S[kb]}, s62, -v8")
    for kb in range(8):
        A(f"v_exp_f32 v{S[kb]}, v{S[kb]}")
    A("s_nop 0")
    for kb in range(8):
        A(f"v_cvt_pk_bf16_f32 v{S[kb]+1}, v{S[kb]}, v{S[kb]}")
    for kb in range(8):
        A(f"ds_write_b32 v6, v{S[kb]+1} offset:{kb*16}")
    A(f"v_add_f32 v9, v{S[0]}, v{S[1]}\nv_add_f32 v10, v{S[2]}, v{S[3]}\nv_add_f32 v11, v{S[4]}, v{S[5]}\nv_add_f32 v12, v{S[6]}, v{S[7]}")
    A("v_add_f32 v9, v9, v10\nv_add_f32 v11, v11, v12\nv_add_f32 v9, v9, v11")
    for r in (8, 4, 2, 1):
        A(f"s_nop 1\nv_add_f32_dpp v9, v9, v9 row_ror:{r} row_mask:0xf bank_mask:0xf")
    A(f"v_lshlrev_b32 v10, 5, v2\ns_lshl_b32 s62, s39, 3\ns_add_u32 s62, s62, {L_ML}\nv_add_u32 v11, s62, v10")
    A("v_cmp_eq_u32 vcc, 0, v3\ns_and_saveexec_b64 s[64:65], vcc")
    A("ds_write_b64 v11, v[8:9]")
    A(f"v_mov_b32 v12, {C_M}\nv_mov_b32 v13, 1\ns_mov_b64 exec, 1\nds_add_rtn_u32 v14, v12, v13\ns_waitcnt lgkmcnt(0)\nv_cmp_eq_u32 vcc, 3, v14\ns_mov_b64 exec, -1")
    A("s_cbranch_vccz L_noml")
    A(f"ds_read_b128 v[16:19], v10 offset:{L_ML}\nds_read_b128 v[20:23], v10 offset:{L_ML+16}\ns_waitcnt lgkmcnt(0)")
    A("v_max3_f32 v24, v16, v18, v20\nv_max_f32 v24, v24, v22")
    A("v_sub_f32 v16, v16, v24\nv_sub_f32 v18, v18, v24\nv_sub_f32 v20, v20, v24\nv_sub_f32 v22, v22, v24")
    A("v_exp_f32 v16, v16\nv_exp_f32 v18, v18\nv_exp_f32 v20, v20\nv_exp_f32 v22, v22")
    A("s_nop 0\nv_mul_f32 v25, v16, v17\nv_fmac_f32 v25, v18, v19\nv_fmac_f32 v25, v20, v21\nv_fmac_f32 v25, v22, v23")
    A("s_mov_b32 s67, 0xfffffffe\nv_min_u32 v24, s67, v24\nv_min_u32 v25, s67, v25")
    A("v_lshlrev_b32 v13, 8, v2")
    A(f"s_lshl_b32 s62, s34, 10\ns_lshl_b32 s63, s36, 6\ns_add_u32 s62, s62, s63\ns_lshl_b32 s63, s37, 3\ns_add_u32 s62, s62, s63\ns_add_u32 s62, s62, {W_ML}")
    A("v_cmp_eq_u32 vcc, 0, v3\ns_and_saveexec_b64 s[64:65], vcc")
    A("buffer_store_dwordx2 v[24:25], v13, s[44:47], s62 offen sc1")
    A("s_mov_b64 exec, s[64:65]")
    A("L_noml:")
    srd(48, 16, 0x400000)
    srd(52, 24, 1792*512*2)
    A(f"v_and_b32 v6, 3, v3\nv_lshlrev_b32 v6, 2, v6\nds_read_b32 v12, v6 offset:{L_GT}")
    tile_voff(1024)
    tr_base(7, 8)
    A(f"s_lshl_b32 s62, s39, 5\nv_add_u32 v7, s62, v7")
    A("v_and_b32 v13, 7, v1\nv_lshlrev_b32 v13, 3, v13")
    A(f"s_lshl_b32 s68, s34, 10\ns_lshl_b32 s63, s36, 8\ns_add_u32 s68, s68, s63\ns_lshl_b32 s63, s39, 6\ns_add_u32 s68, s68, s63\ns_add_u32 s68, s68, {W_ML}")
    A("v_lshlrev_b32 v5, 3, v1")
    A(f"s_lshl_b32 s66, s34, 16\ns_lshl_b32 s63, s36, 14\ns_add_u32 s66, s66, s63\ns_lshl_b32 s63, s39, 12\ns_add_u32 s66, s66, s63\ns_add_u32 s66, s66, {W_OP}")
    A("s_waitcnt lgkmcnt(0)")
    stamp(3)
    A("s_barrier")
    HOP, WOP, WDOP, DB, DA, OG, OOP = 64, 72, 88, 96, 100, 104, 120
    A("buffer_load_dwordx2 v[10:11], v13, s[44:47], s68 offen sc1")
    A(f"s_lshl_b32 s62, s38, 17\ns_lshl_b32 s63, s37, 7\ns_add_u32 s62, s62, s63\ns_lshl_b32 s69, s39, 15\ns_add_u32 s62, s62, s69")
    A(f"s_lshl_b32 s67, s39, 12\ns_add_u32 s67, s67, {L_WO}")
    dma_tile(48, 4, 62, 67, 1024)
    A(f"s_lshl_b32 s62, s38, 16\ns_add_u32 s62, s62, s63\ns_lshl_b32 s69, s39, 14\ns_add_u32 s62, s62, s69")
    A(f"s_lshl_b32 s67, s39, 11\ns_add_u32 s67, s67, {L_WD}")
    dma_tile(52, 2, 62, 67, 1024)
    A(f"v_and_b32 v8, 3, v3\nv_lshlrev_b32 v8, 7, v8\nv_lshlrev_b32 v9, 4, v2\nv_add_u32 v8, v8, v9")
    for s in range(2):
        A(f"ds_read_b128 v[{HOP+4*s}:{HOP+4*s+3}], v8 offset:{L_H+s*64}")
    stamp(4)
    A("s_barrier")
    def oloads():
        for c in range(8):
            A(f"buffer_load_dwordx2 v[{OG+2*c}:{OG+2*c+1}], v5, s[44:47], s66 offen offset:{c*512} sc1")
    oloads()
    A("s_waitcnt vmcnt(14)")
    A(f"s_mov_b32 s63, {SPIN}")
    A("L_mlpoll:")
    A("v_max_u32 v14, v10, v11\nv_cmp_eq_u32 vcc, -1, v14\ns_cbranch_vccz L_mlpoll_done")
    A("s_sub_u32 s63, s63, 1\ns_cmp_eq_u32 s63, 0\ns_cbranch_scc1 L_mlpoll_done")
    A("buffer_load_dwordx2 v[10:11], v13, s[44:47], s68 offen sc1\ns_waitcnt vmcnt(0)\ns_branch L_mlpoll")
    A("L_mlpoll_done:")
    A("v_mov_b32 v14, v10")
    A("s_nop 1\nv_max_f32_dpp v14, v14, v14 quad_perm:[1,0,3,2] row_mask:0xf bank_mask:0xf")
    A("s_nop 1\nv_max_f32_dpp v14, v14, v14 quad_perm:[2,3,0,1] row_mask:0xf bank_mask:0xf")
    A("s_nop 1\nv_max_f32_dpp v14, v14, v14 row_half_mirror row_mask:0xf bank_mask:0xf")
    A("v_sub_f32 v10, v10, v14\nv_exp_f32 v10, v10\ns_nop 0\nv_mul_f32 v11, v10, v11")
    A("s_nop 1\nv_add_f32_dpp v11, v11, v11 quad_perm:[1,0,3,2] row_mask:0xf bank_mask:0xf")
    A("s_nop 1\nv_add_f32_dpp v11, v11, v11 quad_perm:[2,3,0,1] row_mask:0xf bank_mask:0xf")
    A("s_nop 1\nv_add_f32_dpp v11, v11, v11 row_half_mirror row_mask:0xf bank_mask:0xf")
    A("v_rcp_f32 v11, v11\ns_nop 0\nv_mul_f32 v10, v10, v11\ns_nop 0")
    for c in range(8):
        A(f"v_readlane_b32 s{72+c}, v10, {c}")
    A("s_waitcnt vmcnt(8)")
    lds_signal(C_W, 8, 9)
    A("v_lshlrev_b32 v6, 8, v3\nv_lshlrev_b32 v13, 4, v2\nv_add_u32 v6, v6, v13")
    A(f"s_lshl_b32 s62, s38, 13\ns_lshl_b32 s67, s37, 10\ns_add_u32 s62, s62, s67\ns_lshl_b32 s67, s39, 6\ns_add_u32 s62, s62, s67\ns_add_u32 s62, s62, {W_OUTP}")
    lds_wait(C_W, 4, 8, 9)
    for s in range(2):
        A(f"ds_read_b64_tr_b16 v[{WDOP+4*s}:{WDOP+4*s+1}], v7 offset:{L_WD+s*4096}\nds_read_b64_tr_b16 v[{WDOP+4*s+2}:{WDOP+4*s+3}], v7 offset:{L_WD+s*4096+512}")
    for s in range(4):
        A(f"ds_read_b64_tr_b16 v[{WOP+4*s}:{WOP+4*s+1}], v7 offset:{L_WO+s*4096}\nds_read_b64_tr_b16 v[{WOP+4*s+2}:{WOP+4*s+3}], v7 offset:{L_WO+s*4096+512}")
    A(f"v_lshlrev_b32 v7, 2, v1\ns_lshl_b32 s67, s39, 8\ns_add_u32 s67, s67, {L_O}\nv_add_u32 v7, s67, v7")
    A(f"v_and_b32 v8, 3, v3\nv_lshlrev_b32 v8, 8, v8\nv_lshlrev_b32 v9, 4, v2\nv_add_u32 v8, v8, v9")
    A("v_sub_f32 v13, 1.0, v12")
    A("s_waitcnt lgkmcnt(0)")
    A(f"v_mfma_f32_16x16x32_bf16 v[{DB}:{DB+3}], v[{WDOP}:{WDOP+3}], v[{HOP}:{HOP+3}], 0")
    A(f"v_mfma_f32_16x16x32_bf16 v[{DB}:{DB+3}], v[{WDOP+4}:{WDOP+7}], v[{HOP+4}:{HOP+7}], v[{DB}:{DB+3}]")
    A(f"s_mov_b32 s63, {SPIN}")
    A("s_nop 6")
    for r in range(4):
        A(f"v_mul_f32 v{DB+r}, v13, v{DB+r}")
    A("L_opoll:")
    A("s_waitcnt vmcnt(0)")
    o = OG
    A(f"v_max3_u32 v10, v{o}, v{o+1}, v{o+2}\nv_max3_u32 v11, v{o+3}, v{o+4}, v{o+5}\nv_max3_u32 v10, v10, v{o+6}, v{o+7}\nv_max3_u32 v11, v11, v{o+8}, v{o+9}")
    A(f"v_max3_u32 v10, v10, v{o+10}, v{o+11}\nv_max3_u32 v11, v11, v{o+12}, v{o+13}\nv_max3_u32 v10, v10, v{o+14}, v{o+15}\nv_max_u32 v10, v10, v11")
    A("v_cmp_eq_u32 vcc, -1, v10\ns_cbranch_vccz L_opoll_done")
    A("s_sub_u32 s63, s63, 1\ns_cmp_eq_u32 s63, 0\ns_cbranch_scc1 L_opoll_done")
    oloads()
    A("s_branch L_opoll")
    A("L_opoll_done:")
    stamp(5)
    A(f"v_mul_f32 v10, s72, v{o}\nv_mul_f32 v11, s72, v{o+1}")
    for c in range(1, 8):
        A(f"v_fmac_f32 v10, s{72+c}, v{o+2*c}\nv_fmac_f32 v11, s{72+c}, v{o+2*c+1}")
    A("v_cvt_pk_bf16_f32 v10, v10, v11")
    A("ds_write_b32 v7, v10")
    A("s_waitcnt lgkmcnt(0)")
    A("s_barrier")
    for s in range(4):
        A(f"ds_read_b128 v[{OOP+4*s}:{OOP+4*s+3}], v8 offset:{L_O + s*64}")
    for s in range(4):
        A(f"s_waitcnt lgkmcnt({3-s})")
        c = "0" if s == 0 else f"v[{DA}:{DA+3}]"
        A(f"v_mfma_f32_16x16x32_bf16 v[{DA}:{DA+3}], v[{WOP+4*s}:{WOP+4*s+3}], v[{OOP+4*s}:{OOP+4*s+3}], {c}")
    A("s_mov_b32 s67, 0xfffffffe")
    A("v_cmp_gt_u32 vcc, 4, v3\ns_and_saveexec_b64 s[64:65], vcc")
    A("s_nop 4")
    for r in range(4):
        A(f"v_fma_f32 v{DA+r}, v{DA+r}, v12, v{DB+r}")
    for r in range(4):
        A(f"v_min_u32 v{DA+r}, s67, v{DA+r}")
    A(f"buffer_store_dwordx4 v[{DA}:{DA+3}], v6, s[44:47], s62 offen sc1")
    stamp(6)
    stamps_out()
    A("s_endpgm")

    A("L_vpath:")
    XOP, WT = 64, 128
    A("s_cmp_eq_u32 s3, 5\ns_cbranch_scc1 L_v1\ns_cmp_eq_u32 s3, 6\ns_cbranch_scc1 L_v2\ns_cmp_eq_u32 s3, 7\ns_cbranch_scc1 L_v3")
    def xloads(nsteps, soff):
        srd(48, 8, 4096)
        A("v_and_b32 v5, 3, v3\nv_lshlrev_b32 v5, 10, v5\nv_lshlrev_b32 v6, 4, v2\nv_add_u32 v5, v5, v6")
        for s in range(nsteps):
            A(f"buffer_load_dwordx4 v[{XOP+4*s}:{XOP+4*s+3}], v5, s[48:51], {soff} offen offset:{s*64}")
    def arrive():
        A("s_waitcnt vmcnt(0)")
        A(f"v_mov_b32 v4, {C_A}\nv_mov_b32 v5, 1")
        A("s_mov_b64 exec, 1")
        A("ds_add_rtn_u32 v6, v4, v5")
        A("s_waitcnt lgkmcnt(0)")
        A("v_cmp_eq_u32 vcc, 3, v6")
        A("s_mov_b64 exec, -1")
        A("s_cbranch_vccz L_vcommon")
        A("s_branch L_signal")
    def tile_gemv(ltile, vstore, sstore):
        tr_base(7, 8)
        A("s_waitcnt vmcnt(0)")
        stamp(1)
        for t in range(4):
            for s in range(4):
                r = WT + (t * 4 + s) * 4
                A(f"ds_read_b64_tr_b16 v[{r}:{r+1}], v7 offset:{ltile+s*4096+t*32}\nds_read_b64_tr_b16 v[{r+2}:{r+3}], v7 offset:{ltile+s*4096+t*32+512}")
        A("s_waitcnt lgkmcnt(0)")
        for s in range(4):
            for t in range(4):
                r = WT + (t * 4 + s) * 4; d = 16 + 4 * t
                c = "0" if s == 0 else f"v[{d}:{d+3}]"
                A(f"v_mfma_f32_16x16x32_bf16 v[{d}:{d+3}], v[{r}:{r+3}], v[{XOP+4*s}:{XOP+4*s+3}], {c}")
        A("v_cmp_gt_u32 vcc, 4, v3\ns_and_saveexec_b64 s[64:65], vcc")
        A("s_nop 7")
        for t in range(4):
            A(f"buffer_store_dwordx4 v[{16+4*t}:{19+4*t}], v{vstore}, s[44:47], s{sstore} offen offset:{t*64} sc1")
        A("s_mov_b64 exec, s[64:65]")
    srd(52, 14, 0x400000)
    tile_voff(8192)
    A("s_lshr_b32 s66, s35, 2\ns_and_b32 s68, s35, 3")
    A("s_lshl_b32 s62, s34, 10\ns_lshl_b32 s63, s66, 7\ns_add_u32 s62, s62, s63\ns_lshl_b32 s63, s68, 20\ns_add_u32 s62, s62, s63")
    A(f"s_mov_b32 s67, {L_WQ}")
    dma_tile(52, 16 if "wq" not in skip else 0, 62, 67, 8192)
    A("s_lshl_b32 s69, s68, 8")
    xloads(4, "s69")
    A("s_barrier")
    A("v_lshlrev_b32 v9, 16, v3\nv_lshlrev_b32 v10, 4, v2\nv_add_u32 v9, v9, v10")
    A(f"s_lshl_b32 s62, s34, 13\ns_lshr_b32 s63, s66, 1\ns_lshl_b32 s63, s63, 11\ns_add_u32 s62, s62, s63\ns_lshl_b32 s63, s68, 9\ns_add_u32 s62, s62, s63\ns_and_b32 s63, s66, 1\ns_lshl_b32 s63, s63, 8\ns_add_u32 s62, s62, s63\ns_add_u32 s62, s62, {W_QP}")
    tile_gemv(L_WQ, 9, 62)
    A("v_lshlrev_b32 v5, 8, v2\nv_mov_b32 v36, -1\nv_mov_b32 v37, -1")
    A(f"s_lshl_b32 s62, s34, 10\ns_lshl_b32 s63, s36, 6\ns_add_u32 s62, s62, s63\ns_lshl_b32 s63, s37, 3\ns_add_u32 s62, s62, s63\ns_add_u32 s62, s62, {W_ML}")
    A("v_cmp_eq_u32 vcc, 0, v3\ns_and_saveexec_b64 s[64:65], vcc")
    A("buffer_store_dwordx2 v[36:37], v5, s[44:47], s62 offen sc1")
    A("s_mov_b64 exec, s[64:65]")
    arrive()
    A("L_v1:")
    A("s_cmp_ge_u32 s2, %d\ns_cbranch_scc1 L_v1_skip" % (224 if "h" not in skip else 0))
    A("s_lshr_b32 s66, s2, 3\ns_bfe_u32 s68, s2, 0x20001\ns_and_b32 s69, s2, 1")
    A("s_cmp_eq_u32 s69, 0\ns_cselect_b32 s52, s20, s22\ns_cselect_b32 s53, s21, s23\ns_mov_b32 s54, %d\ns_mov_b32 s55, 0x20000" % (1792*512*2))
    tile_voff(3584)
    A(f"s_lshl_b32 s62, s66, 7\ns_mul_i32 s63, s68, {128*3584}\ns_add_u32 s62, s62, s63")
    A(f"s_mov_b32 s67, {L_G}")
    dma_tile(52, 16, 62, 67, 3584)
    A("s_lshl_b32 s70, s68, 8")
    xloads(4, "s70")
    A("s_barrier")
    A("v_lshlrev_b32 v9, 11, v3\nv_lshlrev_b32 v10, 4, v2\nv_add_u32 v9, v9, v10")
    A(f"s_lshl_b32 s62, s66, 13\ns_lshl_b32 s63, s69, 2\ns_add_u32 s63, s63, s68\ns_lshl_b32 s63, s63, 8\ns_add_u32 s62, s62, s63\ns_add_u32 s62, s62, {W_GP}")
    tile_gemv(L_G, 9, 62)
    arrive()
    A("L_v1_skip:")
    A("s_barrier")
    arrive()
    A("L_v2:")
    srd(52, 26, 1024)
    A("v_lshlrev_b32 v4, 4, v2")
    for s in range(16):
        A(f"buffer_load_dwordx4 v[{WT+4*s}:{WT+4*s+3}], v4, s[52:55], 0 offen offset:{s*64}")
    xloads(16, "0")
    A("v_lshlrev_b32 v6, 4, v1")
    A(f"s_lshl_b32 s62, s38, 13\ns_lshl_b32 s67, s37, 10\ns_add_u32 s62, s62, s67\ns_add_u32 s62, s62, {W_OUTP}")
    A("v_mov_b32 v8, -1\nv_mov_b32 v9, -1\nv_mov_b32 v10, -1\nv_mov_b32 v11, -1")
    if "clr" not in skip: A("buffer_store_dwordx4 v[8:11], v6, s[44:47], s62 offen sc1")
    A("s_barrier")
    A("s_waitcnt vmcnt(0)")
    for s in range(16):
        c = "0" if s == 0 else "v[16:19]"
        A(f"v_mfma_f32_16x16x32_bf16 v[16:19], v[{WT+4*s}:{WT+4*s+3}], v[{XOP+4*s}:{XOP+4*s+3}], {c}")
    A("s_nop 7")
    sigmoid(20, 16, 21)
    A(f"v_lshlrev_b32 v6, 2, v1")
    A("s_mov_b64 exec, 15")
    A(f"ds_write_b32 v6, v20 offset:{L_GT}")
    A("s_mov_b64 exec, -1")
    arrive()
    A("L_v3:")
    A(f"v_lshlrev_b32 v4, 2, v1\nv_mov_b32 v5, 0\ns_mov_b64 exec, 15\nds_write_b32 v4, v5 offset:{L_CNT}\ns_mov_b64 exec, -1")
    A("v_lshrrev_b32 v6, 5, v1\nv_lshlrev_b32 v6, 14, v6\nv_and_b32 v7, 31, v1\nv_lshlrev_b32 v7, 4, v7\nv_add_u32 v6, v6, v7")
    A(f"s_lshl_b32 s62, s34, 16\ns_lshl_b32 s63, s36, 12\ns_add_u32 s62, s62, s63\ns_lshl_b32 s63, s37, 9\ns_add_u32 s62, s62, s63\ns_add_u32 s62, s62, {W_OP}")
    A("v_mov_b32 v8, -1\nv_mov_b32 v9, -1\nv_mov_b32 v10, -1\nv_mov_b32 v11, -1")
    if "clr" not in skip: A("buffer_store_dwordx4 v[8:11], v6, s[44:47], s62 offen sc1")
    A("s_add_u32 s62, s62, 32768")
    if "clr" not in skip: A("buffer_store_dwordx4 v[8:11], v6, s[44:47], s62 offen sc1")
    A("s_waitcnt lgkmcnt(0)")
    A("s_barrier")
    arrive()
    A("L_signal:")
    srd(56, 30, 256)
    A("s_lshl_b32 s62, s34, 5\nv_mov_b32 v4, s62\nv_mov_b32 v5, 1")
    A("s_mov_b64 exec, 1")
    A("buffer_atomic_add v5, v4, s[56:59], 0 offen")
    A("s_mov_b64 exec, -1")
    A("L_vcommon:")
    VD = 64
    srd(40, 12, 0x2000000)
    A("v_lshlrev_b32 v4, 4, v1")
    A("v_and_b32 v5, 3, v1\nv_and_b32 v6, 1, v1\nv_mov_b32 v7, 0xffff\nv_lshlrev_b32 v6, 4, v6\nv_lshlrev_b32 v7, v6, v7")
    A("v_cmp_gt_u32 vcc, 2, v5\ns_nop 1\nv_cndmask_b32 v8, 0, v7, vcc\nv_sub_u32 v9, v7, v8")
    A(f"v_lshrrev_b32 v10, 2, v3\nv_lshlrev_b32 v10, 2, v10\nv_add_u32 v10, v10, v2\nv_mul_u32_u24 v10, {PST*4}, v10")
    A(f"s_mul_i32 s62, s39, {P_WAVE}\ns_add_u32 s62, s62, {L_P}\nv_add_u32 v10, s62, v10")
    stamp(2)
    A("s_barrier")
    stamp(3)
    n = 0
    for kb in range(8):
        A(f"s_add_u32 s62, s61, {kb}\ns_and_b32 s62, s62, 7\ns_lshl_b32 s62, s62, 12\ns_add_u32 s62, s62, s60")
        for s in range(4):
            r = VD + (kb * 4 + s) * 4
            A(f"buffer_load_dwordx4 v[{r}:{r+3}], v4, s[40:43], s62 offen offset:{s*1024} {nt}")
            if n == B2_AT: A("s_barrier")
            if n >= DV - 1 and n < 31: A(f"s_waitcnt vmcnt({DV-1})")
            n += 1
    stamp(4)
    PR, AT, D1, D2 = 16, 48, 56, 60
    for q4 in range(8):
        A(f"ds_read_b128 v[{PR+4*q4}:{PR+4*q4+3}], v10 offset:{q4*16}")
    A(f"v_lshlrev_b32 v11, 5, v2")
    A(f"ds_read_b128 v[192:195], v11 offset:{L_ML}\nds_read_b128 v[196:199], v11 offset:{L_ML+16}")
    A(f"s_lshl_b32 s62, s39, 3\nv_add_u32 v12, s62, v11\nds_read_b32 v200, v12 offset:{L_ML}")
    A("s_waitcnt lgkmcnt(0)")
    def ands(p):
        a = AT + 2 * (p % 4)
        A(f"v_and_b32 v{a}, v{PR+p}, v8\nv_and_b32 v{a+1}, v{PR+p}, v9")
    ands(0); ands(1)
    for p in range(32):
        a = AT + 2 * (p % 4); r = VD + 4 * p
        if p + 2 < 32: ands(p + 2)
        else: A("s_nop 0")
        A(f"s_waitcnt vmcnt({31-p})")
        c1 = "0" if p == 0 else f"v[{D1}:{D1+3}]"; c2 = "0" if p == 0 else f"v[{D2}:{D2+3}]"
        A(f"v_mfma_f32_16x16x16_bf16 v[{D1}:{D1+3}], v[{a}:{a+1}], v[{r}:{r+1}], {c1}")
        A(f"v_mfma_f32_16x16x16_bf16 v[{D2}:{D2+3}], v[{a}:{a+1}], v[{r+2}:{r+3}], {c2}")
        if p == 15:
            A("v_max3_f32 v201, v192, v194, v196\nv_max_f32 v201, v201, v198\nv_sub_f32 v200, v200, v201\nv_exp_f32 v200, v200")
            A(f"v_lshlrev_b32 v11, 9, v2\nv_lshlrev_b32 v12, 5, v3\nv_add_u32 v11, v11, v12\ns_lshl_b32 s62, s39, 11\ns_add_u32 s62, s62, {L_R}\nv_add_u32 v11, s62, v11")
            A(f"v_lshlrev_b32 v12, 3, v1\ns_lshl_b32 s62, s39, 9\ns_add_u32 s62, s62, {L_R}\nv_add_u32 v12, s62, v12")
            A(f"s_lshl_b32 s62, s34, 16\ns_lshl_b32 s63, s39, 14\ns_add_u32 s62, s62, s63\ns_lshl_b32 s63, s36, 12\ns_add_u32 s62, s62, s63\ns_lshl_b32 s63, s37, 9\ns_add_u32 s62, s62, s63\ns_add_u32 s62, s62, {W_OP}")
            A("v_lshlrev_b32 v13, 3, v1\ns_mov_b32 s67, 0xfffffffe")
    A("s_nop 6")
    for r in range(4): A(f"v_mul_f32 v{D1+r}, v200, v{D1+r}")
    for r in range(4): A(f"v_mul_f32 v{D2+r}, v200, v{D2+r}")
    A(f"ds_write_b128 v11, v[{D1}:{D1+3}]\nds_write_b128 v11, v[{D2}:{D2+3}] offset:16")
    A("s_waitcnt lgkmcnt(0)")
    stamp(5)
    A("s_barrier")
    for u in range(4):
        A(f"ds_read_b64 v[{16+2*u}:{17+2*u}], v12 offset:{u*2048}")
    A("s_waitcnt lgkmcnt(0)")
    A("v_add_f32 v16, v16, v18\nv_add_f32 v17, v17, v19\nv_add_f32 v20, v20, v22\nv_add_f32 v21, v21, v23\nv_add_f32 v16, v16, v20\nv_add_f32 v17, v17, v21")
    A("v_min_u32 v16, s67, v16\nv_min_u32 v17, s67, v17")
    A("buffer_store_dwordx2 v[16:17], v13, s[44:47], s62 offen sc1")
    A("s_cmp_eq_u32 s3, 4\ns_cbranch_scc1 L_final")
    stamp(6)
    stamps_out()
    A("s_endpgm")
    A("L_final:")
    srd(48, 28, 4096)
    A("v_lshrrev_b32 v4, 3, v1\nv_lshlrev_b32 v4, 13, v4\nv_and_b32 v5, 7, v1\nv_lshlrev_b32 v5, 2, v5\nv_add_u32 v4, v4, v5")
    A(f"s_lshr_b32 s63, s38, 3\ns_and_b32 s66, s38, 7\ns_lshl_b32 s62, s37, 10\ns_lshl_b32 s67, s63, 8\ns_add_u32 s62, s62, s67\ns_lshl_b32 s67, s66, 5\ns_add_u32 s62, s62, s67\ns_add_u32 s62, s62, {W_OUTP}")
    A("s_add_u32 s68, s62, 65536\ns_add_u32 s69, s62, 131072\ns_add_u32 s70, s62, 196608")
    A("s_lshl_b32 s63, s63, 10\ns_lshl_b32 s67, s37, 7\ns_add_u32 s63, s63, s67\ns_lshl_b32 s67, s66, 4\ns_add_u32 s66, s63, s67")
    A("v_lshlrev_b32 v5, 1, v1")
    A("s_barrier")
    A(f"s_mov_b32 s63, {SPIN}")
    A("L_fpoll:")
    for nn, sr in enumerate((62, 68, 69, 70)):
        A(f"buffer_load_dword v{8+nn}, v4, s[44:47], s{sr} offen sc1")
    A("s_waitcnt vmcnt(0)")
    A("v_max3_u32 v12, v8, v9, v10\nv_max_u32 v12, v12, v11\nv_cmp_eq_u32 vcc, -1, v12\ns_cbranch_vccz L_fpoll_done")
    A("s_sub_u32 s63, s63, 1\ns_cmp_eq_u32 s63, 0\ns_cbranch_scc1 L_fpoll_done")
    A("s_branch L_fpoll")
    A("L_fpoll_done:")
    A("v_add_f32 v8, v8, v9\nv_add_f32 v10, v10, v11\nv_add_f32 v8, v8, v10")
    A("s_nop 1\nv_add_f32_dpp v8, v8, v8 row_ror:8 row_mask:0xf bank_mask:0xf")
    A("v_mov_b32 v9, v8\ns_nop 1\nv_permlane16_swap_b32 v8, v9\ns_nop 1\nv_add_f32 v8, v8, v9")
    A("v_mov_b32 v9, v8\ns_nop 1\nv_permlane32_swap_b32 v8, v9\ns_nop 1\nv_add_f32 v8, v8, v9")
    A("v_cvt_pk_bf16_f32 v8, v8, v8")
    A("s_mov_b64 exec, 0xff")
    A("buffer_store_short v8, v5, s[48:51], s66 offen")
    stamp(6)
    if stamps: A("s_mov_b64 exec, -1")
    stamps_out()
    A("L_end:\ns_endpgm")
    A('.section .rodata,"a"\n.p2align 6')
    A(f".amdhsa_kernel {NAME}")
    A(".amdhsa_next_free_vgpr 256\n.amdhsa_next_free_sgpr 102\n.amdhsa_accum_offset 256\n.amdhsa_group_segment_fixed_size 0\n.amdhsa_kernarg_size 104\n.amdhsa_user_sgpr_count 2\n.amdhsa_user_sgpr_kernarg_segment_ptr 1\n.amdhsa_system_sgpr_workgroup_id_x 1\n.end_amdhsa_kernel")
    return A

def write(A, path):
    hdr = open("gated_mix__gqa_block_cached__glu_gated_glu__decode.s.ref").read().split("\n")
    hdr = [l for l in hdr if l.startswith(";") and "@launch" not in l and "Override" not in l and "grid=ceil" not in l][:14]
    open(path, "w").write("\n".join(hdr) + "\n" + A.text())

if __name__ == "__main__":
    import argparse
    ap = argparse.ArgumentParser()
    ap.add_argument("-o", default="k.s")
    ap.add_argument("--stamps", action="store_true")
    ap.add_argument("-D", type=int, default=5)
    ap.add_argument("--DV", type=int, default=None)
    ap.add_argument("--b1", type=int, default=31)
    ap.add_argument("--b2", type=int, default=31)
    ap.add_argument("--rot", type=int, default=1)
    ap.add_argument("--ntw", default="nt")
    ap.add_argument("--nt", default="nt")
    ap.add_argument("--skip", default="")
    a = ap.parse_args()
    A = gen(D=a.D, DV=a.DV, B1_AT=a.b1, B2_AT=a.b2, stamps=a.stamps, rot_mode=a.rot, ntw=a.ntw, nt=a.nt, skip=tuple(a.skip.split(',')))
    for w in check_hazards(A.L): print(w)
    write(A, a.o)
    print("wrote", a.o, len(A.L), "lines")
```
